```python
import torch

def _softmax(x, axis=-1):
    return torch.softmax(x, dim=axis)
def _gelu(x):
    return torch.nn.functional.gelu(x, approximate="tanh")
def _silu(x):
    return torch.nn.functional.silu(x)
def _sigmoid(x):
    return torch.sigmoid(x)
def _layernorm(x, axis=-1, eps=1e-5):
    m = x.mean(dim=axis, keepdim=True)
    v = x.var(dim=axis, keepdim=True, unbiased=False)
    return (x - m) / torch.sqrt(v + eps)
def _scatter_add(tgt, idx, src, axis=0):
    return tgt.clone().index_add_(axis, idx, src)
def _segment_sum(src, seg, n):
    out = torch.zeros((n,) + src.shape[1:], dtype=src.dtype)
    return out.index_add_(0, seg, src)
def _pad(x, pw):
    flat = tuple(v for pair in reversed(pw) for v in pair)
    return torch.nn.functional.pad(x, flat)

kernel_name = 'gated_mix__ssm_conv_s5__dense_activation_relu__prompt'

def setup_inputs():

    _w = (lambda a: (lambda t: t.to(torch.bfloat16) if t.is_floating_point() else t)(torch.as_tensor(a)))
    def _A_setup():
        B, S, D = 1, 2048, 640
        P = D
        Lambda_re = -0.5 * (lambda _x: torch.exp(torch.as_tensor(_x)))((lambda *s: torch.randn(*s, dtype=torch.bfloat16) * 0.8)(P))
        Lambda_im = (lambda *s: torch.randn(*s, dtype=torch.bfloat16) * 0.8)(P) * 1.0
        B_re = (lambda *s: torch.randn(*s, dtype=torch.bfloat16) * 0.8)(P, D) * (D ** -0.5)
        B_im = (lambda *s: torch.randn(*s, dtype=torch.bfloat16) * 0.8)(P, D) * (D ** -0.5)
        C_re = (lambda *s: torch.randn(*s, dtype=torch.bfloat16) * 0.8)(D, P) * (P ** -0.5)
        C_im = (lambda *s: torch.randn(*s, dtype=torch.bfloat16) * 0.8)(D, P) * (P ** -0.5)
        log_dt = (lambda *s: torch.randn(*s, dtype=torch.bfloat16) * 0.8)(P) * 0.3 - 2.0
        Dskip = (lambda *s: torch.randn(*s, dtype=torch.bfloat16) * 0.8)(D)
        return {
            "x": _w((lambda *s: torch.randn(*s, dtype=torch.bfloat16) * 0.05)(B, S, D)),
            "Lambda_re": _w(Lambda_re),
            "Lambda_im": _w(Lambda_im),
            "B_re": _w(B_re),
            "B_im": _w(B_im),
            "C_re": _w(C_re),
            "C_im": _w(C_im),
            "log_dt": _w(log_dt),
            "Dskip": _w(Dskip),
        }
    _A_in = _A_setup()

    def _B_setup():
        B, S, D, Dff = 1, 2048, 640, 1728
        return {
            "x": _w((lambda *s: torch.randn(*s, dtype=torch.bfloat16) * 0.05)(B, S, D)),
            "w1": _w((lambda *s: torch.randn(*s, dtype=torch.bfloat16) * 0.05)(D, Dff)),
            "w2": _w((lambda *s: torch.randn(*s, dtype=torch.bfloat16) * 0.05)(Dff, D)),
        }
    _B_in = _B_setup()

    return {
        "A_x": _A_in["x"],
        "A_Lambda_re": _A_in["Lambda_re"],
        "A_Lambda_im": _A_in["Lambda_im"],
        "A_B_re": _A_in["B_re"],
        "A_B_im": _A_in["B_im"],
        "A_C_re": _A_in["C_re"],
        "A_C_im": _A_in["C_im"],
        "A_log_dt": _A_in["log_dt"],
        "A_Dskip": _A_in["Dskip"],
        "B_x": _B_in["x"],
        "B_w1": _B_in["w1"],
        "B_w2": _B_in["w2"],
        "gate_w": _w((lambda *s: torch.randn(*s, dtype=torch.bfloat16) * 0.05)(640) * 16.0),
    }

def reference(A_x, A_Lambda_re, A_Lambda_im, A_B_re, A_B_im, A_C_re, A_C_im, A_log_dt, A_Dskip, B_x, B_w1, B_w2, gate_w):
    def _A_ref(x, Lambda_re, Lambda_im, B_re, B_im, C_re, C_im, log_dt, Dskip):
        Bsz, L, H = x.shape
        Lam = Lambda_re + 1j * Lambda_im
        Bmat = B_re + 1j * B_im
        Cmat = C_re + 1j * C_im
        dt = torch.exp(log_dt)
        Lam_bar = torch.exp(dt * Lam)
        B_bar = ((Lam_bar - 1.0) / Lam)[:, None] * Bmat
        Bu = torch.einsum("bld,pd->blp", x + 0j, B_bar)
        h = torch.zeros_like(Bu[:, 0, :])
        hs = []
        for t in range(L):
            h = Lam_bar[None, :] * h + Bu[:, t, :]
            hs.append(h)
        hseq = torch.stack(hs, 1)
        y = 2.0 * torch.einsum("blp,dp->bld", hseq, Cmat).real + x * Dskip[None, None, :]
        return y

    def _B_ref(x, w1, w2):
        h = torch.einsum("bsd,df->bsf", x, w1)
        zero = torch.zeros_like(h)
        h = torch.maximum(h, zero)
        return torch.einsum("bsf,fd->bsd", h, w2)

    x = A_x
    g = _sigmoid((x * gate_w).sum(-1, keepdims=True))
    a = _A_ref(x, A_Lambda_re, A_Lambda_im, A_B_re, A_B_im, A_C_re, A_C_im, A_log_dt, A_Dskip)
    b = _B_ref(x, B_w1, B_w2)
    return g * a + (1 - g) * b
```

```python
class A:
    def __init__(s): s.l=[]
    def __call__(s, t): s.l.append("    "+t)
    def lab(s, n): s.l.append(n+":")
    def c(s, t): s.l.append("    ; "+t)
    def text(s): return "\n".join(s.l)+"\n"

WS_LOC=0; WS_F=0x500000; WS_HRELU=0x600000; WS_HS=0xD00000; WS_G=0x1200000

def srd(a, d, lo, hi, nbytes):
    a(f"s_mov_b32 s{d}, s{lo}"); a(f"s_and_b32 s{d+1}, s{hi}, 0xffff")
    a(f"s_mov_b32 s{d+2}, {nbytes}"); a(f"s_mov_b32 s{d+3}, 0x00020000")

def lam_consts(a, vp, sL, sI, sT, t):
    a(f"v_lshlrev_b32 v{t+4}, 1, v{vp}")
    a(f"buffer_load_ushort v{t+5}, v{t+4}, s[{sL}:{sL+3}], 0 offen")
    a(f"buffer_load_ushort v{t+6}, v{t+4}, s[{sI}:{sI+3}], 0 offen")
    a(f"buffer_load_ushort v{t+7}, v{t+4}, s[{sT}:{sT+3}], 0 offen")
    a("s_waitcnt vmcnt(0)")
    a(f"v_lshlrev_b32 v{t+5}, 16, v{t+5}")
    a(f"v_lshlrev_b32 v{t+6}, 16, v{t+6}")
    a(f"v_lshlrev_b32 v{t+7}, 16, v{t+7}")
    a(f"v_mul_f32 v{t+7}, 0x3fb8aa3b, v{t+7}")
    a(f"v_exp_f32 v{t+7}, v{t+7}")
    a("s_nop 1")
    a(f"v_cvt_pk_bf16_f32 v{t+7}, v{t+7}, v{t+7}")
    a(f"v_lshlrev_b32 v{t+7}, 16, v{t+7}")
    a(f"v_mul_f32 v{t+8}, v{t+7}, v{t+5}")
    a(f"v_mul_f32 v{t+9}, v{t+7}, v{t+6}")
    a(f"v_mul_f32 v{t+8}, 0x3fb8aa3b, v{t+8}")
    a(f"v_exp_f32 v{t+8}, v{t+8}")
    a(f"v_mul_f32 v{t+9}, 0.15915494, v{t+9}")
    a(f"v_cos_f32 v{t}, v{t+9}")
    a(f"v_sin_f32 v{t+1}, v{t+9}")
    a("s_nop 1")
    a(f"v_mul_f32 v{t}, v{t}, v{t+8}")
    a(f"v_mul_f32 v{t+1}, v{t+1}, v{t+8}")
    a(f"v_add_f32 v{t+8}, -1.0, v{t}")
    a(f"v_mul_f32 v{t+9}, v{t+5}, v{t+5}")
    a(f"v_fma_f32 v{t+9}, v{t+6}, v{t+6}, v{t+9}")
    a(f"v_rcp_f32 v{t+9}, v{t+9}")
    a(f"v_mul_f32 v{t+10}, v{t+8}, v{t+5}")
    a(f"v_fma_f32 v{t+10}, v{t+1}, v{t+6}, v{t+10}")
    a(f"v_mul_f32 v{t+11}, v{t+1}, v{t+5}")
    a(f"v_fma_f32 v{t+11}, -v{t+8}, v{t+6}, v{t+11}")
    a(f"v_mul_f32 v{t+2}, v{t+10}, v{t+9}")
    a(f"v_mul_f32 v{t+3}, v{t+11}, v{t+9}")
```

```python
from common import *
AS=144; BSK=320; AREG=18432; BUF=38912
def gen_k1():
    a=A()
    a.lab("k1_kernel")
    a("s_cmp_ge_u32 s2, 384"); a("s_cbranch_scc1 K1_END")
    a("s_load_dwordx16 s[44:59], s[0:1], 0")
    a("s_load_dwordx2 s[60:61], s[0:1], 80")
    a("s_load_dwordx2 s[62:63], s[0:1], 120")
    a("v_lshrrev_b32 v1, 6, v0")
    a("v_and_b32 v2, 63, v0")
    a("v_lshrrev_b32 v3, 3, v0")
    a("s_waitcnt lgkmcnt(0)")
    srd(a,4,44,45,2621440)
    a("s_cmp_ge_u32 s2, 160"); a("s_cbranch_scc1 K1_FFN_SETUP")
    a("s_and_b32 s36, s2, 15"); a("s_lshr_b32 s37, s2, 4")
    srd(a,8,50,51,819200); srd(a,12,52,53,819200)
    srd(a,16,62,63,5242880)
    a(f"s_add_u32 s64, s62, {WS_F}"); a("s_addc_u32 s65, s63, 0")
    srd(a,20,64,65,327680)
    srd(a,24,46,47,1280); srd(a,28,48,49,1280); srd(a,32,58,59,1280)
    a("s_lshl_b32 s41, s37, 6")
    a("v_add_u32 v8, s41, v3")
    a("v_mul_u32_u24 v8, 1280, v8")
    a("v_and_b32 v9, 7, v0"); a("v_lshlrev_b32 v9, 4, v9")
    a("v_add_u32 v8, v8, v9")
    a("v_add_u32 v10, 40960, v8")
    a("s_mov_b32 s42, 128")
    a("s_mov_b32 s43, 0")
    a("s_branch K1_COMMON")
    a.lab("K1_FFN_SETUP")
    a("s_sub_u32 s41, s2, 160"); a("s_and_b32 s36, s41, 15"); a("s_lshr_b32 s37, s41, 4")
    srd(a,8,60,61,2211840)
    a(f"s_add_u32 s64, s62, {WS_HRELU}"); a("s_addc_u32 s65, s63, 0")
    srd(a,16,64,65,7077888)
    a("v_lshrrev_b32 v8, 4, v0"); a("v_mul_u32_u24 v8, 3456, v8")
    a("v_and_b32 v9, 15, v0"); a("v_lshlrev_b32 v9, 4, v9")
    a("v_add_u32 v8, v8, v9")
    a("s_lshl_b32 s41, s37, 8"); a("v_add_u32 v8, s41, v8")
    a("v_add_u32 v9, 55296, v8"); a("v_add_u32 v10, 110592, v8"); a("v_add_u32 v11, 165888, v8")
    a("s_mov_b32 s42, 221184")
    a("s_mov_b32 s43, 1")
    a.lab("K1_COMMON")
    a("s_lshl_b32 s41, s36, 7")
    a("v_add_u32 v4, s41, v3"); a("v_mul_u32_u24 v4, 1280, v4")
    a("v_and_b32 v5, 7, v0"); a("v_lshlrev_b32 v5, 4, v5"); a("v_add_u32 v4, v4, v5")
    a("v_add_u32 v5, 40960, v4"); a("v_add_u32 v6, 81920, v4"); a("v_add_u32 v7, 122880, v4")
    a(f"v_mul_u32_u24 v12, {AS}, v3"); a("v_and_b32 v13, 7, v0"); a("v_lshlrev_b32 v13, 4, v13")
    a("v_add_u32 v12, v12, v13")
    a(f"v_add_u32 v56, {AREG}, v12")
    a("v_lshrrev_b32 v13, 4, v0"); a(f"v_mul_u32_u24 v13, {BSK}, v13")
    a("v_and_b32 v14, 15, v0"); a("v_lshlrev_b32 v14, 4, v14"); a("v_add_u32 v13, v13, v14")
    a(f"v_add_u32 v13, {AREG}, v13")
    a("v_lshrrev_b32 v14, 1, v1"); a("v_and_b32 v15, 1, v1")
    a("v_and_b32 v16, 31, v2")
    a("v_bfe_u32 v17, v16, 2, 1"); a("v_lshlrev_b32 v17, 5, v17")
    a("v_lshrrev_b32 v18, 3, v16"); a("v_lshl_add_u32 v17, v18, 2, v17")
    a("v_and_b32 v18, 3, v16"); a("v_add_u32 v17, v17, v18")
    a("s_cmp_eq_u32 s43, 1"); a("s_cselect_b32 s41, -1, 0")
    a("v_mov_b32 v18, s41"); a("v_cmp_ne_u32 vcc, 0, v18"); a("s_nop 1"); a("v_cndmask_b32 v17, v17, v16, vcc")
    a("v_lshl_add_u32 v17, v14, 6, v17")
    a(f"v_mul_u32_u24 v17, {AS}, v17")
    a("v_lshrrev_b32 v18, 5, v2"); a("v_lshl_add_u32 v17, v18, 4, v17")
    a("v_lshl_add_u32 v19, v15, 6, v16"); a(f"v_mul_u32_u24 v19, {AS}, v19")
    a("v_lshl_add_u32 v19, v18, 4, v19"); a(f"v_add_u32 v18, {AREG}, v19")
    a("v_lshrrev_b32 v20, 5, v2"); a("v_lshlrev_b32 v20, 3, v20")
    a("v_bfe_u32 v21, v2, 2, 2"); a("v_add_u32 v20, v20, v21"); a(f"v_mul_u32_u24 v20, {BSK}, v20")
    a("v_bfe_u32 v21, v2, 4, 1"); a("v_lshlrev_b32 v21, 4, v21")
    a("v_and_b32 v22, 3, v2"); a("v_lshl_add_u32 v21, v22, 2, v21"); a("v_lshl_add_u32 v21, v15, 6, v21")
    a("v_lshl_add_u32 v20, v21, 1, v20"); a(f"v_add_u32 v19, {AREG}, v20")
    for r in range(64): a(f"v_mov_b32 v{64+r}, 0")
    a("s_mov_b32 s38, 0"); a("s_mov_b32 s39, 0"); a("s_mov_b32 s40, 0")
    def gload(kind):
        for i in range(4): a(f"buffer_load_dwordx4 v[{24+4*i}:{27+4*i}], v{4+i}, s[4:7], s38 offen")
        if kind==0:
            a("buffer_load_dwordx4 v[40:43], v8, s[8:11], s39 offen")
            a("buffer_load_dwordx4 v[44:47], v8, s[12:15], s39 offen")
            a("buffer_load_dwordx4 v[48:51], v10, s[8:11], s39 offen")
            a("buffer_load_dwordx4 v[52:55], v10, s[12:15], s39 offen")
        else:
            for i in range(4): a(f"buffer_load_dwordx4 v[{40+4*i}:{43+4*i}], v{8+i}, s[8:11], s39 offen")
    def lwrite(kind, boff):
        for i in range(4): a(f"ds_write_b128 v12, v[{24+4*i}:{27+4*i}] offset:{boff+i*4608}")
        if kind==0:
            for i in range(4): a(f"ds_write_b128 v56, v[{40+4*i}:{43+4*i}] offset:{boff+i*4608}")
        else:
            for i in range(4): a(f"ds_write_b128 v13, v[{40+4*i}:{43+4*i}] offset:{boff+i*5120}")
    def compute(kind, boff):
        for kk in range(4):
            ai = 16*AS if kind==0 else 32*AS
            a(f"ds_read_b128 v[128:131], v17 offset:{boff+kk*32}")
            a(f"ds_read_b128 v[132:135], v17 offset:{boff+kk*32+ai}")
            if kind==0:
                a(f"ds_read_b128 v[136:139], v18 offset:{boff+kk*32}")
                a(f"ds_read_b128 v[140:143], v18 offset:{boff+kk*32+32*AS}")
            else:
                for j in range(2):
                    o=boff+kk*16*BSK+j*64
                    a(f"ds_read_b64_tr_b16 v[{136+4*j}:{137+4*j}], v19 offset:{o}")
                    a(f"ds_read_b64_tr_b16 v[{138+4*j}:{139+4*j}], v19 offset:{o+4*BSK}")
            a("s_waitcnt lgkmcnt(0)")
            for i in range(2):
                for j in range(2):
                    acc=64+(i*2+j)*16
                    if kind==0: a(f"v_mfma_f32_32x32x16_bf16 v[{acc}:{acc+15}], v[{128+4*i}:{131+4*i}], v[{136+4*j}:{139+4*j}], v[{acc}:{acc+15}]")
                    else:       a(f"v_mfma_f32_32x32x16_bf16 v[{acc}:{acc+15}], v[{136+4*j}:{139+4*j}], v[{128+4*i}:{131+4*i}], v[{acc}:{acc+15}]")
    for kind,nm in ((0,"S"),(1,"F")):
        if kind==0: a("s_cmp_eq_u32 s43, 1"); a("s_cbranch_scc1 K1_LOOP_F")
        else: a.lab("K1_LOOP_F")
        gload(kind); a("s_waitcnt vmcnt(0)"); lwrite(kind,0)
        a("s_add_u32 s38, s38, 128"); a("s_add_u32 s39, s39, s42")
        a("s_waitcnt lgkmcnt(0)"); a("s_barrier")
        a.lab(f"K1_L{nm}")
        for half in range(2):
            gload(kind)
            compute(kind, half*BUF)
            a("s_waitcnt vmcnt(0)"); lwrite(kind,(1-half)*BUF)
            a("s_add_u32 s38, s38, 128"); a("s_add_u32 s39, s39, s42")
            a("s_waitcnt lgkmcnt(0)"); a("s_barrier")
        a("s_add_u32 s40, s40, 2"); a("s_cmp_lt_u32 s40, 10"); a(f"s_cbranch_scc1 K1_L{nm}")
        a("s_nop 15")
        if kind==0: a("s_branch K1_EPI_S")
    a("s_cmp_eq_u32 s37, 13"); a("s_cselect_b32 s41, 1, 0")
    a("v_mov_b32 v20, s41"); a("v_and_b32 v20, v20, v15")
    a("v_cmp_eq_u32 vcc, 0, v20"); a("s_and_saveexec_b64 s[66:67], vcc"); a("s_cbranch_execz K1_END")
    a("s_lshl_b32 s41, s36, 7"); a("v_lshl_add_u32 v20, v14, 6, v16"); a("v_add_u32 v20, s41, v20")
    a("v_mul_u32_u24 v20, 3456, v20")
    a("s_lshl_b32 s41, s37, 8"); a("v_lshrrev_b32 v21, 5, v2"); a("v_lshlrev_b32 v21, 3, v21")
    a("v_lshl_add_u32 v21, v15, 7, v21"); a("v_add3_u32 v20, v20, v21, s41")
    a("v_add_u32 v21, 110592, v20")
    for i in range(2):
        for j in range(2):
            acc=64+(i*2+j)*16
            for g in range(4):
                r=acc+4*g
                for q in range(4): a(f"v_max_f32 v{r+q}, 0, v{r+q}")
                a(f"v_cvt_pk_bf16_f32 v22, v{r}, v{r+1}"); a(f"v_cvt_pk_bf16_f32 v23, v{r+2}, v{r+3}")
                a(f"buffer_store_dwordx2 v[22:23], v{20+i}, s[16:19], 0 offen offset:{j*64+g*16}")
                a("s_nop 1")
    a("s_branch K1_END")
    a.lab("K1_EPI_S")
    a("s_lshl_b32 s41, s37, 6"); a("v_lshl_add_u32 v20, v15, 5, v16"); a("v_add_u32 v20, s41, v20")
    lam_consts(a,20,24,28,32,128)
    a("s_lshl_b32 s41, s36, 7"); a("v_lshrrev_b32 v21, 5, v2"); a("v_lshlrev_b32 v21, 5, v21")
    a("v_lshl_add_u32 v21, v14, 6, v21"); a("v_add_u32 v21, s41, v21")
    a("v_mul_u32_u24 v22, 640, v21"); a("v_add_u32 v22, v22, v20"); a("v_lshlrev_b32 v22, 2, v22")
    a("v_mov_b32 v140, 0"); a("v_mov_b32 v141, 0")
    a("s_mov_b32 s41, 0")
    for s in range(32):
        i=s>>4; r=s&15
        xr=64+(i*2+0)*16+r; xi=64+(i*2+1)*16+r
        a(f"v_mul_f32 v142, v130, v{xr}"); a(f"v_fma_f32 v142, -v131, v{xi}, v142")
        a(f"v_mul_f32 v143, v130, v{xi}"); a(f"v_fma_f32 v143, v131, v{xr}, v143")
        a("v_fma_f32 v142, v128, v140, v142"); a("v_fma_f32 v143, v128, v141, v143")
        a("v_fma_f32 v142, -v129, v141, v142"); a("v_fma_f32 v143, v129, v140, v143")
        a("v_mov_b32 v140, v142"); a("v_mov_b32 v141, v143")
        a("v_cvt_pk_bf16_f32 v144, v140, v141")
        a(f"buffer_store_dword v144, v22, s[16:19], s41 offen")
        a("s_add_u32 s41, s41, 2560")
    a("v_lshrrev_b32 v21, 5, v21"); a("v_mul_u32_u24 v21, 640, v21"); a("v_add_u32 v21, v21, v20"); a("v_lshlrev_b32 v21, 3, v21")
    a("buffer_store_dwordx2 v[140:141], v21, s[20:23], 0 offen")
    a.lab("K1_END")
    a("s_endpgm")
    return a.text()
```

```python
from common import *
def gen_k2():
    a=A()
    a.lab("k2_kernel")
    a("s_cmp_ge_u32 s2, 448"); a("s_cbranch_scc1 K2_END")
    a("s_load_dwordx16 s[44:59], s[0:1], 0")
    a("s_load_dwordx2 s[60:61], s[0:1], 96")
    a("s_load_dwordx2 s[62:63], s[0:1], 120")
    a("s_waitcnt lgkmcnt(0)")
    a("s_cmp_ge_u32 s2, 320"); a("s_cbranch_scc1 K2_GATE")
    a("s_mul_hi_u32 s36, s2, 0x33333334"); a("s_mul_i32 s37, s36, 5"); a("s_sub_u32 s37, s2, s37")
    srd(a,4,62,63,5242880)
    a(f"s_add_u32 s64, s62, {WS_F}"); a("s_addc_u32 s65, s63, 0"); srd(a,8,64,65,327680)
    a(f"s_add_u32 s64, s62, {WS_HS}"); a("s_addc_u32 s65, s63, 0"); srd(a,12,64,65,5242880)
    srd(a,24,46,47,1280); srd(a,28,48,49,1280); srd(a,32,58,59,1280)
    a("s_lshl_b32 s41, s37, 7"); a("v_add_u32 v1, s41, v0")
    lam_consts(a,1,24,28,32,16)
    a("v_mov_b32 v20, v16"); a("v_mov_b32 v21, v17")
    for _ in range(5):
        a("v_mul_f32 v22, v20, v20"); a("v_fma_f32 v22, -v21, v21, v22")
        a("v_mul_f32 v23, v20, v21"); a("v_add_f32 v21, v23, v23"); a("v_mov_b32 v20, v22")
    a("v_mov_b32 v24, 0"); a("v_mov_b32 v25, 0")
    a("v_lshlrev_b32 v2, 3, v1")
    a("s_mov_b32 s40, 0"); a("s_mov_b32 s41, 0")
    a.lab("K2_CL")
    a("s_cmp_ge_u32 s40, s36"); a("s_cbranch_scc1 K2_CD")
    a("buffer_load_dwordx2 v[26:27], v2, s[8:11], s41 offen")
    a("v_mul_f32 v22, v20, v24"); a("v_fma_f32 v22, -v21, v25, v22")
    a("v_mul_f32 v23, v20, v25"); a("v_fma_f32 v23, v21, v24, v23")
    a("s_waitcnt vmcnt(0)")
    a("v_add_f32 v24, v22, v26"); a("v_add_f32 v25, v23, v27")
    a("s_add_u32 s40, s40, 1"); a("s_add_u32 s41, s41, 5120"); a("s_branch K2_CL")
    a.lab("K2_CD")
    a("v_mul_f32 v22, v16, v24"); a("v_fma_f32 v22, -v17, v25, v22")
    a("v_mul_f32 v23, v16, v25"); a("v_fma_f32 v23, v17, v24, v23")
    a("s_lshl_b32 s41, s36, 5")
    a("s_mul_i32 s42, s41, 2560")
    a("v_lshlrev_b32 v3, 2, v1")
    a("v_lshlrev_b32 v4, 1, v1")
    for tt in range(32):
        a(f"buffer_load_dword v{32+tt}, v3, s[4:7], s42 offen")
        a("s_add_u32 s42, s42, 2560")
    a("s_mul_i32 s42, s41, 2560")
    for tt in range(32):
        a(f"s_waitcnt vmcnt({31-tt})")
        a(f"v_lshlrev_b32 v26, 16, v{32+tt}"); a(f"v_and_b32 v27, 0xffff0000, v{32+tt}")
        a("v_add_f32 v26, v26, v22"); a("v_add_f32 v27, v27, v23")
        a("v_add_f32 v26, v26, v26"); a("v_mul_f32 v27, -2.0, v27")
        a("v_cvt_pk_bf16_f32 v26, v26, v27")
        a("v_lshrrev_b32 v27, 16, v26")
        a("buffer_store_short v26, v4, s[12:15], s42 offen")
        a("buffer_store_short v27, v4, s[12:15], s42 offen offset:1280")
        a("s_add_u32 s42, s42, 2560")
        a("v_mul_f32 v28, v16, v22"); a("v_fma_f32 v28, -v17, v23, v28")
        a("v_mul_f32 v29, v16, v23"); a("v_fma_f32 v23, v17, v22, v29"); a("v_mov_b32 v22, v28")
    a("s_branch K2_END")
    a.lab("K2_GATE")
    a("s_sub_u32 s36, s2, 320")
    srd(a,4,44,45,2621440); srd(a,8,60,61,1280)
    a(f"s_add_u32 s64, s62, {WS_G}"); a("s_addc_u32 s65, s63, 0"); srd(a,12,64,65,8192)
    a("v_and_b32 v1, 63, v0"); a("v_lshrrev_b32 v2, 6, v0")
    a("v_lshlrev_b32 v3, 2, v1")
    for j in range(5): a(f"buffer_load_dword v{8+j}, v3, s[8:11], 0 offen offset:{j*256}")
    a("s_lshl_b32 s41, s36, 4"); a("v_lshl_add_u32 v4, v2, 3, s41")
    a("v_mul_u32_u24 v5, 1280, v4"); a("v_add_u32 v5, v5, v3")
    for r in range(8):
        for j in range(5): a(f"buffer_load_dword v{16+j}, v5, s[4:7], 0 offen offset:{j*256}")
        a("v_add_u32 v5, 1280, v5")
        a("s_waitcnt vmcnt(0)")
        a("v_mov_b32 v30, 0")
        for j in range(5):
            a(f"v_lshlrev_b32 v24, 16, v{16+j}"); a(f"v_lshlrev_b32 v25, 16, v{8+j}")
            a("v_mul_f32 v24, v24, v25"); a("v_cvt_pk_bf16_f32 v24, v24, v24"); a("v_lshlrev_b32 v24, 16, v24"); a("v_add_f32 v30, v30, v24")
            a(f"v_and_b32 v24, 0xffff0000, v{16+j}"); a(f"v_and_b32 v25, 0xffff0000, v{8+j}")
            a("v_mul_f32 v24, v24, v25"); a("v_cvt_pk_bf16_f32 v24, v24, v24"); a("v_lshlrev_b32 v24, 16, v24"); a("v_add_f32 v30, v30, v24")
        for off in (0x041F,0x081F,0x101F,0x201F,0x401F):
            a(f"ds_swizzle_b32 v24, v30 offset:{off}"); a("s_waitcnt lgkmcnt(0)"); a("v_add_f32 v30, v30, v24")
        a("s_nop 0"); a("v_readlane_b32 s42, v30, 32"); a("s_nop 1"); a("v_add_f32 v30, s42, v30")
        a("v_cvt_pk_bf16_f32 v30, v30, v30"); a("v_lshlrev_b32 v30, 16, v30")
        a("v_mul_f32 v30, 0xbfb8aa3b, v30"); a("v_exp_f32 v30, v30"); a("s_nop 1"); a("v_add_f32 v30, 1.0, v30"); a("v_rcp_f32 v30, v30"); a("s_nop 1")
        a("v_cvt_pk_bf16_f32 v30, v30, v30"); a("v_lshlrev_b32 v30, 16, v30")
        a(f"v_add_u32 v24, {r}, v4"); a("v_lshlrev_b32 v24, 2, v24")
        a("v_cmp_eq_u32 vcc, 0, v1"); a("s_and_saveexec_b64 s[66:67], vcc")
        a("buffer_store_dword v30, v24, s[12:15], 0 offen")
        a("s_mov_b64 exec, s[66:67]")
    a.lab("K2_END")
    a("s_endpgm")
    return a.text()
```

```python
from common import *
WST=176
def gen_k3():
    a=A()
    a.lab("k3_kernel")
    a("s_cmp_ge_u32 s2, 256"); a("s_cbranch_scc1 K3_END")
    a("s_load_dwordx16 s[44:59], s[0:1], 0")
    a("s_load_dwordx4 s[60:63], s[0:1], 88")
    a("s_load_dwordx4 s[64:67], s[0:1], 104")
    a("s_load_dwordx2 s[68:69], s[0:1], 120")
    a("s_load_dwordx2 s[70:71], s[0:1], 64")
    a("v_lshrrev_b32 v1, 6, v0"); a("v_and_b32 v2, 63, v0")
    a("s_nop 0"); a("v_readfirstlane_b32 s36, v1")
    a("s_and_b32 s37, s2, 31"); a("s_lshr_b32 s38, s2, 5")
    a("v_and_b32 v3, 15, v2"); a("v_lshrrev_b32 v4, 4, v2")
    a("s_waitcnt lgkmcnt(0)")
    for r in range(80): a(f"v_mov_b32 v{96+r}, 0")
    a("s_cmp_ge_u32 s36, 2"); a("s_cbranch_scc1 K3_BW")
    a(f"s_add_u32 s72, s68, {WS_HS}"); a("s_addc_u32 s73, s69, 0"); srd(a,4,72,73,5242880)
    a("s_cmp_eq_u32 s36, 0"); a("s_cselect_b32 s72, s54, s56"); a("s_cselect_b32 s73, s55, s57"); srd(a,8,72,73,819200)
    a("s_lshl_b32 s41, s37, 6"); a("v_add_u32 v5, s41, v3"); a("v_mul_u32_u24 v5, 2560, v5")
    a("v_lshl_add_u32 v5, v4, 4, v5"); a("s_mul_i32 s41, s36, 1280"); a("v_add_u32 v5, s41, v5")
    for i in range(1,4): a(f"v_add_u32 v{5+i}, {i*16*2560}, v5")
    a("s_mul_i32 s41, s38, 80"); a("v_add_u32 v9, s41, v3"); a("v_mul_u32_u24 v9, 1280, v9"); a("v_lshl_add_u32 v9, v4, 4, v9")
    for j in range(1,5): a(f"v_add_u32 v{9+j}, {j*16*1280}, v9")
    a("s_mov_b32 s40, 0"); a("s_mov_b32 s42, 20")
    def ld(set_):
        b=16+set_*36
        for i in range(4): a(f"buffer_load_dwordx4 v[{b+4*i}:{b+4*i+3}], v{5+i}, s[4:7], s40 offen")
        for j in range(5): a(f"buffer_load_dwordx4 v[{b+16+4*j}:{b+16+4*j+3}], v{9+j}, s[8:11], s40 offen")
        a("s_add_u32 s40, s40, 64")
    def mm(set_):
        b=16+set_*36
        for i in range(4):
            for j in range(5):
                acc=96+(i*5+j)*4
                a(f"v_mfma_f32_16x16x32_bf16 v[{acc}:{acc+3}], v[{b+16+4*j}:{b+16+4*j+3}], v[{b+4*i}:{b+4*i+3}], v[{acc}:{acc+3}]")
    ld(0)
    a.lab("K3_AL")
    ld(1); a("s_waitcnt vmcnt(9)"); mm(0)
    ld(0); a("s_waitcnt vmcnt(9)"); mm(1)
    a("s_sub_u32 s42, s42, 2"); a("s_cmp_gt_u32 s42, 0"); a("s_cbranch_scc1 K3_AL")
    a("s_waitcnt vmcnt(0)")
    a("s_branch K3_RED")
    a.lab("K3_BW")
    a(f"s_add_u32 s72, s68, {WS_HRELU}"); a("s_addc_u32 s73, s69, 0"); srd(a,4,72,73,7077888)
    srd(a,8,60,61,2211840)
    a("s_sub_u32 s43, s36, 2")
    a("s_lshl_b32 s41, s37, 6"); a("v_add_u32 v5, s41, v3"); a("v_mul_u32_u24 v5, 3456, v5")
    a("v_lshl_add_u32 v5, v4, 4, v5"); a("s_mul_i32 s41, s43, 1728"); a("v_add_u32 v5, s41, v5")
    for i in range(1,4): a(f"v_add_u32 v{5+i}, {i*16*3456}, v5")
    a("s_mov_b32 s41, 0x1999999a")
    a("s_mul_i32 s72, s43, 864*1280"); a("s_mul_i32 s73, s38, 160"); a("s_add_u32 s72, s72, s73")
    a("s_mul_i32 s73, s43, 8192"); a("s_add_u32 s73, s73, 65536")
    for m in range(5):
        a(f"v_add_u32 v88, {64*m}, v2"); a("v_mul_hi_u32 v89, v88, s41"); a("v_mul_u32_u24 v90, 10, v89"); a("v_sub_u32 v90, v88, v90")
        a("v_mul_u32_u24 v91, 1280, v89"); a("v_lshl_add_u32 v91, v90, 4, v91"); a(f"v_add_u32 v{9+m}, s72, v91")
        a(f"v_mul_u32_u24 v91, {WST}, v89"); a("v_lshl_add_u32 v91, v90, 4, v91"); a(f"v_add_u32 v{176+m}, s73, v91")
    a("v_lshlrev_b32 v88, 3, v4"); a("v_bfe_u32 v89, v2, 2, 2"); a("v_add_u32 v88, v88, v89"); a(f"v_mul_u32_u24 v88, {WST}, v88")
    a("v_and_b32 v89, 3, v2"); a("v_lshl_add_u32 v88, v89, 3, v88"); a("v_add_u32 v181, s73, v88")
    a("s_mov_b32 s40, 0"); a("s_mov_b32 s39, 0"); a("s_mov_b32 s42, 27")
    a.lab("K3_BL")
    for i in range(4): a(f"buffer_load_dwordx4 v[{16+4*i}:{19+4*i}], v{5+i}, s[4:7], s40 offen")
    for m in range(5): a(f"buffer_load_dwordx4 v[{52+4*m}:{55+4*m}], v{9+m}, s[8:11], s39 offen")
    a("s_add_u32 s40, s40, 64"); a("s_add_u32 s39, s39, 40960")
    a("s_waitcnt vmcnt(0)")
    for m in range(5): a(f"ds_write_b128 v{176+m}, v[{52+4*m}:{55+4*m}]")
    a("s_waitcnt lgkmcnt(0)")
    for j in range(5):
        a(f"ds_read_b64_tr_b16 v[{32+4*j}:{33+4*j}], v181 offset:{j*32}")
        a(f"ds_read_b64_tr_b16 v[{34+4*j}:{35+4*j}], v181 offset:{j*32+4*WST}")
    a("s_waitcnt lgkmcnt(0)")
    for i in range(4):
        for j in range(5):
            acc=96+(i*5+j)*4
            a(f"v_mfma_f32_16x16x32_bf16 v[{acc}:{acc+3}], v[{32+4*j}:{35+4*j}], v[{16+4*i}:{19+4*i}], v[{acc}:{acc+3}]")
    a("s_sub_u32 s42, s42, 1"); a("s_cmp_gt_u32 s42, 0"); a("s_cbranch_scc1 K3_BL")
    a.lab("K3_RED")
    a("s_nop 15")
    a("v_lshlrev_b32 v5, 4, v2")
    a("s_lshr_b32 s41, s36, 1"); a("s_mul_i32 s41, s41, 20480"); a("v_add_u32 v5, s41, v5")
    a("s_and_b32 s41, s36, 1"); a("s_cmp_eq_u32 s41, 0"); a("s_cbranch_scc1 K3_R1")
    for q in range(20): a(f"ds_write_b128 v5, v[{96+4*q}:{99+4*q}] offset:{q*1024}")
    a.lab("K3_R1")
    a("s_waitcnt lgkmcnt(0)"); a("s_barrier")
    a("s_and_b32 s41, s36, 1"); a("s_cmp_eq_u32 s41, 1"); a("s_cbranch_scc1 K3_R2")
    for q in range(20):
        a(f"ds_read_b128 v[16:19], v5 offset:{q*1024}"); a("s_waitcnt lgkmcnt(0)")
        for e in range(4): a(f"v_add_f32 v{96+4*q+e}, v{96+4*q+e}, v{16+e}")
    a("s_cmp_eq_u32 s36, 2"); a("s_cbranch_scc0 K3_R2")
    for q in range(20): a(f"ds_write_b128 v5, v[{96+4*q}:{99+4*q}] offset:{q*1024}")
    a.lab("K3_R2")
    a("s_waitcnt lgkmcnt(0)"); a("s_barrier")
    a("s_cmp_eq_u32 s36, 0"); a("s_cbranch_scc0 K3_END")
    srd(a,4,44,45,2621440); srd(a,8,70,71,1280); srd(a,12,64,65,5242880)
    a(f"s_add_u32 s72, s68, {WS_G}"); a("s_addc_u32 s73, s69, 0"); srd(a,16,72,73,8192)
    a("s_lshl_b32 s41, s37, 6"); a("v_add_u32 v6, s41, v3")
    a("s_mul_i32 s41, s38, 80"); a("v_lshl_add_u32 v7, v4, 2, s41")
    a("v_add_u32 v5, 20480, v5")
    for i in range(4):
        a(f"v_add_u32 v8, {16*i}, v6"); a("v_lshlrev_b32 v9, 2, v8")
        a("buffer_load_dword v10, v9, s[16:19], 0 offen")
        a("v_mul_u32_u24 v9, 640, v8"); a("v_add_u32 v9, v9, v7")
        a("v_lshlrev_b32 v11, 1, v9"); a("v_lshlrev_b32 v12, 2, v9"); a("v_lshlrev_b32 v13, 1, v7")
        for j in range(5):
            q=i*5+j; acc=96+q*4
            a(f"buffer_load_dwordx2 v[20:21], v11, s[4:7], 0 offen offset:{j*32}")
            a(f"buffer_load_dwordx2 v[22:23], v13, s[8:11], 0 offen offset:{j*32}")
            a(f"ds_read_b128 v[16:19], v5 offset:{q*1024}")
            a("s_waitcnt vmcnt(0) lgkmcnt(0)")
            a("v_sub_f32 v24, 1.0, v10"); a("v_cvt_pk_bf16_f32 v24, v24, v24"); a("v_lshlrev_b32 v24, 16, v24")
            for e in range(4):
                xs=20+(e>>1); ds=22+(e>>1)
                if e&1: a(f"v_and_b32 v25, 0xffff0000, v{xs}"); a(f"v_and_b32 v26, 0xffff0000, v{ds}")
                else:   a(f"v_lshlrev_b32 v25, 16, v{xs}"); a(f"v_lshlrev_b32 v26, 16, v{ds}")
                a("v_mul_f32 v25, v25, v26"); a("v_cvt_pk_bf16_f32 v25, v25, v25"); a("v_lshlrev_b32 v25, 16, v25")
                a(f"v_add_f32 v25, v25, v{acc+e}")
                a(f"v_cvt_pk_bf16_f32 v26, v{16+e}, v{16+e}"); a("v_lshlrev_b32 v26, 16, v26")
                a("v_mul_f32 v26, v26, v24"); a("v_cvt_pk_bf16_f32 v26, v26, v26"); a("v_lshlrev_b32 v26, 16, v26")
                a(f"v_fma_f32 v{28+e}, v10, v25, v26")
            a(f"buffer_store_dwordx4 v[28:31], v12, s[12:15], 0 offen offset:{j*64}")
            a("s_nop 1")
    a.lab("K3_END")
    a("s_endpgm")
    return a.text()
```

```python
import re
from k1 import gen_k1
from k2 import gen_k2
from k3 import gen_k3
ref=open('gated_mix__ssm_conv_s5__dense_activation_relu__prompt.s.ref').read()
hdr="\n".join(l for l in ref.splitlines() if l.startswith(';') and '@launch' not in l and 'Override' not in l and 'grid=ceil' not in l)
def kd(n,v,s=96):
    return f""".section .rodata,"a"
.p2align 6
.amdhsa_kernel {n}
  .amdhsa_next_free_vgpr {v}
  .amdhsa_next_free_sgpr {s}
  .amdhsa_accum_offset {v}
  .amdhsa_group_segment_fixed_size 0
  .amdhsa_kernarg_size 128
  .amdhsa_user_sgpr_count 2
  .amdhsa_user_sgpr_kernarg_segment_ptr 1
  .amdhsa_system_sgpr_workgroup_id_x 1
.end_amdhsa_kernel
.text
"""
out=hdr+"""
; @launch kernel=k1_kernel grid=(384,1,1) block=(256,1,1) lds=77824
; @launch kernel=k2_kernel grid=(448,1,1) block=(128,1,1) lds=0
; @launch kernel=k3_kernel grid=(256,1,1) block=(256,1,1) lds=90112
.amdgcn_target "amdgcn-amd-amdhsa--gfx950"
.text
"""
for n,g,v in (("k1_kernel",gen_k1,148),("k2_kernel",gen_k2,64),("k3_kernel",gen_k3,256)):
    out+=f".globl {n}\n.p2align 8\n.type {n},@function\n"+g()+kd(n,v)
open('gated_mix__ssm_conv_s5__dense_activation_relu__prompt.s','w').write(out)
```

```python
from common import *
def gen_k2():
    a=A()
    a.lab("k2_kernel")
    a("s_cmp_ge_u32 s2, 448"); a("s_cbranch_scc1 K2_END")
    a("s_load_dwordx16 s[44:59], s[0:1], 0")
    a("s_load_dwordx2 s[60:61], s[0:1], 96")
    a("s_load_dwordx2 s[62:63], s[0:1], 120")
    a("s_waitcnt lgkmcnt(0)")
    a("s_cmp_ge_u32 s2, 320"); a("s_cbranch_scc1 K2_GATE")
    a("s_mul_hi_u32 s36, s2, 0x33333334"); a("s_mul_i32 s37, s36, 5"); a("s_sub_u32 s37, s2, s37")
    srd(a,4,62,63,5242880)
    a(f"s_add_u32 s64, s62, {WS_F}"); a("s_addc_u32 s65, s63, 0"); srd(a,8,64,65,327680)
    a(f"s_add_u32 s64, s62, {WS_HS}"); a("s_addc_u32 s65, s63, 0"); srd(a,12,64,65,5242880)
    srd(a,24,46,47,1280); srd(a,28,48,49,1280); srd(a,32,58,59,1280)
    a("s_lshl_b32 s41, s37, 7"); a("v_add_u32 v1, s41, v0")
    lam_consts(a,1,24,28,32,16)
    a("v_mov_b32 v20, v16"); a("v_mov_b32 v21, v17")
    for _ in range(5):
        a("v_mul_f32 v22, v20, v20"); a("v_fma_f32 v22, -v21, v21, v22")
        a("v_mul_f32 v23, v20, v21"); a("v_add_f32 v21, v23, v23"); a("v_mov_b32 v20, v22")
    a("v_mov_b32 v24, 0"); a("v_mov_b32 v25, 0")
    a("v_lshlrev_b32 v2, 3, v1")
    a("s_mov_b32 s40, 0"); a("s_mov_b32 s41, 0")
    a.lab("K2_CL")
    a("s_cmp_ge_u32 s40, s36"); a("s_cbranch_scc1 K2_CD")
    for q in range(8): a(f"buffer_load_dwordx2 v[{32+2*q}:{33+2*q}], v2, s[8:11], s41 offen offset:{0}") if q==0 else (a("s_add_u32 s41, s41, 5120"), a(f"buffer_load_dwordx2 v[{32+2*q}:{33+2*q}], v2, s[8:11], s41 offen"))
    a("s_add_u32 s41, s41, 5120")
    for q in range(8):
        a(f"s_waitcnt vmcnt({7-q})")
        a("s_cmp_ge_u32 s40, s36"); a("s_cbranch_scc1 K2_CD")
        a("v_mul_f32 v22, v20, v24"); a("v_fma_f32 v22, -v21, v25, v22")
        a("v_mul_f32 v23, v20, v25"); a("v_fma_f32 v23, v21, v24, v23")
        a(f"v_add_f32 v24, v22, v{32+2*q}"); a(f"v_add_f32 v25, v23, v{33+2*q}")
        a("s_add_u32 s40, s40, 1")
    a("s_branch K2_CL")
    a.lab("K2_CD")
    a("s_waitcnt vmcnt(0)")
    a("v_mul_f32 v22, v16, v24"); a("v_fma_f32 v22, -v17, v25, v22")
    a("v_mul_f32 v23, v16, v25"); a("v_fma_f32 v23, v17, v24, v23")
    a("s_lshl_b32 s41, s36, 5")
    a("s_mul_i32 s42, s41, 2560")
    a("v_lshlrev_b32 v3, 2, v1")
    a("v_lshlrev_b32 v4, 1, v1")
    for tt in range(32):
        a(f"buffer_load_dword v{32+tt}, v3, s[4:7], s42 offen")
        a("s_add_u32 s42, s42, 2560")
    a("s_mul_i32 s42, s41, 2560")
    for tt in range(32):
        a(f"s_waitcnt vmcnt({31-tt})")
        a(f"v_lshlrev_b32 v26, 16, v{32+tt}"); a(f"v_and_b32 v27, 0xffff0000, v{32+tt}")
        a("v_add_f32 v26, v26, v22"); a("v_add_f32 v27, v27, v23")
        a("v_add_f32 v26, v26, v26"); a("v_mul_f32 v27, -2.0, v27")
        a("v_cvt_pk_bf16_f32 v26, v26, v27")
        a("v_lshrrev_b32 v27, 16, v26")
        a("buffer_store_short v26, v4, s[12:15], s42 offen")
        a("buffer_store_short v27, v4, s[12:15], s42 offen offset:1280")
        a("s_add_u32 s42, s42, 2560")
        a("v_mul_f32 v28, v16, v22"); a("v_fma_f32 v28, -v17, v23, v28")
        a("v_mul_f32 v29, v16, v23"); a("v_fma_f32 v23, v17, v22, v29"); a("v_mov_b32 v22, v28")
    a("s_branch K2_END")
    a.lab("K2_GATE")
    a("s_sub_u32 s36, s2, 320")
    srd(a,4,44,45,2621440); srd(a,8,60,61,1280)
    a(f"s_add_u32 s64, s62, {WS_G}"); a("s_addc_u32 s65, s63, 0"); srd(a,12,64,65,8192)
    a("v_and_b32 v1, 63, v0"); a("v_lshrrev_b32 v2, 6, v0")
    a("v_lshlrev_b32 v3, 2, v1")
    for j in range(5): a(f"buffer_load_dword v{8+j}, v3, s[8:11], 0 offen offset:{j*256}")
    a("s_lshl_b32 s41, s36, 4"); a("v_lshl_add_u32 v4, v2, 3, s41")
    a("v_mul_u32_u24 v5, 1280, v4"); a("v_add_u32 v5, v5, v3")
    for r in range(8):
        for j in range(5): a(f"buffer_load_dword v{16+j}, v5, s[4:7], 0 offen offset:{j*256}")
        a("v_add_u32 v5, 1280, v5")
        a("s_waitcnt vmcnt(0)")
        a("v_mov_b32 v30, 0")
        for j in range(5):
            a(f"v_lshlrev_b32 v24, 16, v{16+j}"); a(f"v_lshlrev_b32 v25, 16, v{8+j}")
            a("v_mul_f32 v24, v24, v25"); a("v_cvt_pk_bf16_f32 v24, v24, v24"); a("v_lshlrev_b32 v24, 16, v24"); a("v_add_f32 v30, v30, v24")
            a(f"v_and_b32 v24, 0xffff0000, v{16+j}"); a(f"v_and_b32 v25, 0xffff0000, v{8+j}")
            a("v_mul_f32 v24, v24, v25"); a("v_cvt_pk_bf16_f32 v24, v24, v24"); a("v_lshlrev_b32 v24, 16, v24"); a("v_add_f32 v30, v30, v24")
        for off in (0x041F,0x081F,0x101F,0x201F,0x401F):
            a(f"ds_swizzle_b32 v24, v30 offset:{off}"); a("s_waitcnt lgkmcnt(0)"); a("v_add_f32 v30, v30, v24")
        a("s_nop 0"); a("v_readlane_b32 s42, v30, 32"); a("s_nop 1"); a("v_add_f32 v30, s42, v30")
        a("v_cvt_pk_bf16_f32 v30, v30, v30"); a("v_lshlrev_b32 v30, 16, v30")
        a("v_mul_f32 v30, 0xbfb8aa3b, v30"); a("v_exp_f32 v30, v30"); a("s_nop 1"); a("v_add_f32 v30, 1.0, v30"); a("v_rcp_f32 v30, v30"); a("s_nop 1")
        a("v_cvt_pk_bf16_f32 v30, v30, v30"); a("v_lshlrev_b32 v30, 16, v30")
        a(f"v_add_u32 v24, {r}, v4"); a("v_lshlrev_b32 v24, 2, v24")
        a("v_cmp_eq_u32 vcc, 0, v1"); a("s_and_saveexec_b64 s[66:67], vcc")
        a("buffer_store_dword v30, v24, s[12:15], 0 offen")
        a("s_mov_b64 exec, s[66:67]")
    a.lab("K2_END")
    a("s_endpgm")
    return a.text()
```

```python
from common import *
WST=176
def gen_k3():
    a=A()
    a.lab("k3_kernel")
    a("s_cmp_ge_u32 s2, 256"); a("s_cbranch_scc1 K3_END")
    a("s_load_dwordx16 s[44:59], s[0:1], 0")
    a("s_load_dwordx4 s[60:63], s[0:1], 88")
    a("s_load_dwordx4 s[64:67], s[0:1], 104")
    a("s_load_dwordx2 s[68:69], s[0:1], 120")
    a("s_load_dwordx2 s[70:71], s[0:1], 64")
    a("v_lshrrev_b32 v1, 6, v0"); a("v_and_b32 v2, 63, v0")
    a("s_nop 0"); a("v_readfirstlane_b32 s36, v1")
    a("s_and_b32 s37, s2, 31"); a("s_lshr_b32 s38, s2, 5")
    a("v_and_b32 v3, 15, v2"); a("v_lshrrev_b32 v4, 4, v2")
    a("s_waitcnt lgkmcnt(0)")
    for r in range(80): a(f"v_mov_b32 v{128+r}, 0")
    a("s_cmp_ge_u32 s36, 2"); a("s_cbranch_scc1 K3_BW")
    a(f"s_add_u32 s72, s68, {WS_HS}"); a("s_addc_u32 s73, s69, 0"); srd(a,4,72,73,5242880)
    a("s_cmp_eq_u32 s36, 0"); a("s_cselect_b32 s72, s54, s56"); a("s_cselect_b32 s73, s55, s57"); srd(a,8,72,73,819200)
    a("s_lshl_b32 s41, s37, 6"); a("v_add_u32 v5, s41, v3"); a("v_mul_u32_u24 v5, 2560, v5")
    a("v_lshl_add_u32 v5, v4, 4, v5"); a("s_mul_i32 s41, s36, 1280"); a("v_add_u32 v5, s41, v5")
    for i in range(1,4): a(f"v_add_u32 v{5+i}, {i*16*2560}, v5")
    a("s_mul_i32 s41, s38, 80"); a("v_add_u32 v9, s41, v3"); a("v_mul_u32_u24 v9, 1280, v9"); a("v_lshl_add_u32 v9, v4, 4, v9")
    for j in range(1,5): a(f"v_add_u32 v{9+j}, {j*16*1280}, v9")
    a("s_mov_b32 s40, 0"); a("s_mov_b32 s42, 20")
    def ld(set_):
        b=(16+set_*36) if set_<3 else 208
        for i in range(4): a(f"buffer_load_dwordx4 v[{b+4*i}:{b+4*i+3}], v{5+i}, s[4:7], s40 offen")
        for j in range(5): a(f"buffer_load_dwordx4 v[{b+16+4*j}:{b+16+4*j+3}], v{9+j}, s[8:11], s40 offen")
        a("s_add_u32 s40, s40, 64")
    def mm(set_):
        b=(16+set_*36) if set_<3 else 208
        for i in range(4):
            for j in range(5):
                acc=128+(i*5+j)*4
                a(f"v_mfma_f32_16x16x32_bf16 v[{acc}:{acc+3}], v[{b+16+4*j}:{b+16+4*j+3}], v[{b+4*i}:{b+4*i+3}], v[{acc}:{acc+3}]")
    ld(0); ld(1); ld(2)
    a.lab("K3_AL")
    for u in range(4):
        ld((u+3)%4); a("s_waitcnt vmcnt(27)"); mm(u)
    a("s_sub_u32 s42, s42, 4"); a("s_cmp_gt_u32 s42, 0"); a("s_cbranch_scc1 K3_AL")
    a("s_waitcnt vmcnt(0)")
    a("s_branch K3_RED")
    a.lab("K3_BW")
    a(f"s_add_u32 s72, s68, {WS_HRELU}"); a("s_addc_u32 s73, s69, 0"); srd(a,4,72,73,7077888)
    srd(a,8,60,61,2211840)
    a("s_sub_u32 s43, s36, 2")
    a("s_lshl_b32 s41, s37, 6"); a("v_add_u32 v5, s41, v3"); a("v_mul_u32_u24 v5, 3456, v5")
    a("v_lshl_add_u32 v5, v4, 4, v5"); a("s_mul_i32 s41, s43, 1728"); a("v_add_u32 v5, s41, v5")
    for i in range(1,4): a(f"v_add_u32 v{5+i}, {i*16*3456}, v5")
    a("s_mov_b32 s41, 0x1999999a")
    a("s_mul_i32 s72, s43, 864*1280"); a("s_mul_i32 s73, s38, 160"); a("s_add_u32 s72, s72, s73")
    a("s_mul_i32 s73, s43, 12288"); a("s_add_u32 s73, s73, 65536")
    for m in range(5):
        a(f"v_add_u32 v240, {64*m}, v2"); a("v_mul_hi_u32 v241, v240, s41"); a("v_mul_u32_u24 v242, 10, v241"); a("v_sub_u32 v242, v240, v242")
        a("v_mul_u32_u24 v243, 1280, v241"); a("v_lshl_add_u32 v243, v242, 4, v243"); a(f"v_add_u32 v{9+m}, s72, v243")
        a(f"v_mul_u32_u24 v243, {WST}, v241"); a("v_lshl_add_u32 v243, v242, 4, v243"); a(f"v_add_u32 v{248+m}, s73, v243")
    a("v_lshlrev_b32 v240, 3, v4"); a("v_bfe_u32 v241, v2, 2, 2"); a("v_add_u32 v240, v240, v241"); a(f"v_mul_u32_u24 v240, {WST}, v240")
    a("v_and_b32 v241, 3, v2"); a("v_lshl_add_u32 v240, v241, 3, v240"); a("v_add_u32 v253, s73, v240")
    a("s_mov_b32 s40, 0"); a("s_mov_b32 s39, 0"); a("s_mov_b32 s42, 27")
    def bld(st):
        b=16+st*36
        for i in range(4): a(f"buffer_load_dwordx4 v[{b+4*i}:{b+3+4*i}], v{5+i}, s[4:7], s40 offen")
        for m in range(5): a(f"buffer_load_dwordx4 v[{b+16+4*m}:{b+19+4*m}], v{9+m}, s[8:11], s39 offen")
        a("s_add_u32 s40, s40, 64"); a("s_add_u32 s39, s39, 40960")
    def bwr(st,lb):
        b=16+st*36
        for m in range(5): a(f"ds_write_b128 v{248+m}, v[{b+16+4*m}:{b+19+4*m}] offset:{lb*5632}")
    def brd(fs,lb):
        f=208+fs*20
        for j in range(5):
            a(f"ds_read_b64_tr_b16 v[{f+4*j}:{f+1+4*j}], v253 offset:{lb*5632+j*32}")
            a(f"ds_read_b64_tr_b16 v[{f+2+4*j}:{f+3+4*j}], v253 offset:{lb*5632+j*32+4*WST}")
    def bmm(st,fs,lo,hi):
        b=16+st*36; f=208+fs*20
        for q in range(lo,hi):
            i=q//5; j=q%5; acc=128+q*4
            a(f"v_mfma_f32_16x16x32_bf16 v[{acc}:{acc+3}], v[{f+4*j}:{f+3+4*j}], v[{b+4*i}:{b+3+4*i}], v[{acc}:{acc+3}]")
    bld(0); bld(1); bld(2)
    a("s_waitcnt vmcnt(18)"); bwr(0,0); a("s_waitcnt lgkmcnt(0)"); brd(0,0)
    a.lab("K3_BL")
    for u in range(6):
        st=u%3; fs=u%2
        a("s_waitcnt vmcnt(9)"); bwr((st+1)%3,(u+1)%2)
        a("s_waitcnt lgkmcnt(5)")
        bmm(st,fs,0,10)
        a("s_waitcnt lgkmcnt(0)"); brd(1-fs,(u+1)%2)
        bmm(st,fs,10,20)
        bld(st)
        a("s_sub_u32 s42, s42, 1"); a("s_cmp_eq_u32 s42, 0"); a("s_cbranch_scc1 K3_BD")
    a("s_branch K3_BL")
    a.lab("K3_BD")
    a("s_waitcnt vmcnt(0) lgkmcnt(0)")
    a.lab("K3_RED")
    a("s_nop 15")
    a("v_lshlrev_b32 v5, 4, v2")
    a("s_lshr_b32 s41, s36, 1"); a("s_mul_i32 s41, s41, 20480"); a("v_add_u32 v5, s41, v5")
    a("s_and_b32 s41, s36, 1"); a("s_cmp_eq_u32 s41, 0"); a("s_cbranch_scc1 K3_R1")
    for q in range(20): a(f"ds_write_b128 v5, v[{128+4*q}:{131+4*q}] offset:{q*1024}")
    a.lab("K3_R1")
    a("s_waitcnt lgkmcnt(0)"); a("s_barrier")
    a("s_and_b32 s41, s36, 1"); a("s_cmp_eq_u32 s41, 1"); a("s_cbranch_scc1 K3_R2")
    for q in range(20):
        a(f"ds_read_b128 v[16:19], v5 offset:{q*1024}"); a("s_waitcnt lgkmcnt(0)")
        for e in range(4): a(f"v_add_f32 v{128+4*q+e}, v{128+4*q+e}, v{16+e}")
    a("s_cmp_eq_u32 s36, 2"); a("s_cbranch_scc0 K3_R2")
    for q in range(20): a(f"ds_write_b128 v5, v[{128+4*q}:{131+4*q}] offset:{q*1024}")
    a.lab("K3_R2")
    a("s_waitcnt lgkmcnt(0)"); a("s_barrier")
    a("s_cmp_eq_u32 s36, 0"); a("s_cbranch_scc0 K3_END")
    srd(a,4,44,45,2621440); srd(a,8,70,71,1280); srd(a,12,64,65,5242880)
    a(f"s_add_u32 s72, s68, {WS_G}"); a("s_addc_u32 s73, s69, 0"); srd(a,16,72,73,8192)
    a("s_lshl_b32 s41, s37, 6"); a("v_add_u32 v6, s41, v3")
    a("s_mul_i32 s41, s38, 80"); a("v_lshl_add_u32 v7, v4, 2, s41")
    a("v_add_u32 v5, 20480, v5")
    for i in range(4):
        a(f"v_add_u32 v8, {16*i}, v6"); a("v_lshlrev_b32 v9, 2, v8")
        a("buffer_load_dword v10, v9, s[16:19], 0 offen")
        a("v_mul_u32_u24 v9, 640, v8"); a("v_add_u32 v9, v9, v7")
        a("v_lshlrev_b32 v11, 1, v9"); a("v_lshlrev_b32 v12, 2, v9"); a("v_lshlrev_b32 v13, 1, v7")
        for j in range(5):
            q=i*5+j; acc=128+q*4
            a(f"buffer_load_dwordx2 v[20:21], v11, s[4:7], 0 offen offset:{j*32}")
            a(f"buffer_load_dwordx2 v[22:23], v13, s[8:11], 0 offen offset:{j*32}")
            a(f"ds_read_b128 v[16:19], v5 offset:{q*1024}")
            a("s_waitcnt vmcnt(0) lgkmcnt(0)")
            a("v_sub_f32 v24, 1.0, v10"); a("v_cvt_pk_bf16_f32 v24, v24, v24"); a("v_lshlrev_b32 v24, 16, v24")
            for e in range(4):
                xs=20+(e>>1); ds=22+(e>>1)
                if e&1: a(f"v_and_b32 v25, 0xffff0000, v{xs}"); a(f"v_and_b32 v26, 0xffff0000, v{ds}")
                else:   a(f"v_lshlrev_b32 v25, 16, v{xs}"); a(f"v_lshlrev_b32 v26, 16, v{ds}")
                a("v_mul_f32 v25, v25, v26"); a("v_cvt_pk_bf16_f32 v25, v25, v25"); a("v_lshlrev_b32 v25, 16, v25")
                a(f"v_add_f32 v25, v25, v{acc+e}")
                a(f"v_cvt_pk_bf16_f32 v26, v{16+e}, v{16+e}"); a("v_lshlrev_b32 v26, 16, v26")
                a("v_mul_f32 v26, v26, v24"); a("v_cvt_pk_bf16_f32 v26, v26, v26"); a("v_lshlrev_b32 v26, 16, v26")
                a(f"v_fma_f32 v{28+e}, v10, v25, v26")
            a(f"buffer_store_dwordx4 v[28:31], v12, s[12:15], 0 offen offset:{j*64}")
            a("s_nop 1")
    a.lab("K3_END")
    a("s_endpgm")
    return a.text()
```

```python
from common import *
WST=176
def gen_k3():
    a=A()
    a.lab("k3_kernel")
    a("s_cmp_ge_u32 s2, 256"); a("s_cbranch_scc1 K3_END")
    a("s_load_dwordx16 s[44:59], s[0:1], 0")
    a("s_load_dwordx4 s[60:63], s[0:1], 88")
    a("s_load_dwordx4 s[64:67], s[0:1], 104")
    a("s_load_dwordx2 s[68:69], s[0:1], 120")
    a("s_load_dwordx2 s[70:71], s[0:1], 64")
    a("v_lshrrev_b32 v1, 6, v0"); a("v_and_b32 v2, 63, v0")
    a("s_nop 0"); a("v_readfirstlane_b32 s36, v1")
    a("s_and_b32 s37, s2, 31"); a("s_lshr_b32 s38, s2, 5")
    a("v_and_b32 v3, 15, v2"); a("v_lshrrev_b32 v4, 4, v2")
    a("s_waitcnt lgkmcnt(0)")
    for r in range(80): a(f"v_mov_b32 v{128+r}, 0")
    a("s_cmp_ge_u32 s36, 2"); a("s_cbranch_scc1 K3_BW")
    a(f"s_add_u32 s72, s68, {WS_HS}"); a("s_addc_u32 s73, s69, 0"); srd(a,4,72,73,5242880)
    a("s_cmp_eq_u32 s36, 0"); a("s_cselect_b32 s72, s54, s56"); a("s_cselect_b32 s73, s55, s57"); srd(a,8,72,73,819200)
    a("s_lshl_b32 s41, s37, 6"); a("v_add_u32 v5, s41, v3"); a("v_mul_u32_u24 v5, 2560, v5")
    a("v_lshl_add_u32 v5, v4, 4, v5"); a("s_mul_i32 s41, s36, 1280"); a("v_add_u32 v5, s41, v5")
    for i in range(1,4): a(f"v_add_u32 v{5+i}, {i*16*2560}, v5")
    a("s_mul_i32 s41, s38, 80"); a("v_add_u32 v9, s41, v3"); a("v_mul_u32_u24 v9, 1280, v9"); a("v_lshl_add_u32 v9, v4, 4, v9")
    for j in range(1,5): a(f"v_add_u32 v{9+j}, {j*16*1280}, v9")
    a("s_mov_b32 s40, 0"); a("s_mov_b32 s42, 20")
    def ld(set_):
        b=(16+set_*36) if set_<3 else 208
        for i in range(4): a(f"buffer_load_dwordx4 v[{b+4*i}:{b+4*i+3}], v{5+i}, s[4:7], s40 offen")
        for j in range(5): a(f"buffer_load_dwordx4 v[{b+16+4*j}:{b+16+4*j+3}], v{9+j}, s[8:11], s40 offen")
        a("s_add_u32 s40, s40, 64")
    def mm(set_):
        b=(16+set_*36) if set_<3 else 208
        for i in range(4):
            for j in range(5):
                acc=128+(i*5+j)*4
                a(f"v_mfma_f32_16x16x32_bf16 v[{acc}:{acc+3}], v[{b+16+4*j}:{b+16+4*j+3}], v[{b+4*i}:{b+4*i+3}], v[{acc}:{acc+3}]")
    ld(0); ld(1); ld(2)
    a.lab("K3_AL")
    for u in range(4):
        ld((u+3)%4); a("s_waitcnt vmcnt(27)"); mm(u)
    a("s_sub_u32 s42, s42, 4"); a("s_cmp_gt_u32 s42, 0"); a("s_cbranch_scc1 K3_AL")
    a("s_waitcnt vmcnt(0)")
    a("s_branch K3_RED")
    a.lab("K3_BW")
    a(f"s_add_u32 s72, s68, {WS_HRELU}"); a("s_addc_u32 s73, s69, 0"); srd(a,4,72,73,7077888)
    srd(a,8,60,61,2211840)
    a("s_sub_u32 s43, s36, 2")
    a("s_lshl_b32 s41, s37, 6"); a("v_add_u32 v5, s41, v3"); a("v_mul_u32_u24 v5, 3456, v5")
    a("v_lshl_add_u32 v5, v4, 4, v5"); a("s_mul_i32 s41, s43, 1728"); a("v_add_u32 v5, s41, v5")
    for i in range(1,4): a(f"v_add_u32 v{5+i}, {i*16*3456}, v5")
    a("s_mov_b32 s41, 0x1999999a")
    a("s_mul_i32 s72, s43, 864*1280"); a("s_mul_i32 s73, s38, 160"); a("s_add_u32 s72, s72, s73")
    a("s_mul_i32 s73, s43, 12288"); a("s_add_u32 s73, s73, 65536")
    for m in range(5):
        a(f"v_add_u32 v240, {64*m}, v2"); a("v_mul_hi_u32 v241, v240, s41"); a("v_mul_u32_u24 v242, 10, v241"); a("v_sub_u32 v242, v240, v242")
        a("v_mul_u32_u24 v243, 1280, v241"); a("v_lshl_add_u32 v243, v242, 4, v243"); a(f"v_add_u32 v{9+m}, s72, v243")
        a(f"v_mul_u32_u24 v243, {WST}, v241"); a("v_lshl_add_u32 v243, v242, 4, v243"); a(f"v_add_u32 v{248+m}, s73, v243")
    a("v_lshlrev_b32 v240, 3, v4"); a("v_bfe_u32 v241, v2, 2, 2"); a("v_add_u32 v240, v240, v241"); a(f"v_mul_u32_u24 v240, {WST}, v240")
    a("v_and_b32 v241, 3, v2"); a("v_lshl_add_u32 v240, v241, 3, v240"); a("v_add_u32 v253, s73, v240")
    a("s_mov_b32 s40, 0"); a("s_mov_b32 s39, 0"); a("s_mov_b32 s42, 27")
    def bld(st):
        b=16+st*36
        for i in range(4): a(f"buffer_load_dwordx4 v[{b+4*i}:{b+3+4*i}], v{5+i}, s[4:7], s40 offen")
        for m in range(5): a(f"buffer_load_dwordx4 v[{b+16+4*m}:{b+19+4*m}], v{9+m}, s[8:11], s39 offen")
        a("s_add_u32 s40, s40, 64"); a("s_add_u32 s39, s39, 40960")
    def bwr(st,lb):
        b=16+st*36
        for m in range(5): a(f"ds_write_b128 v{248+m}, v[{b+16+4*m}:{b+19+4*m}] offset:{lb*5632}")
    def brd(fs,lb):
        f=208+fs*20
        for j in range(5):
            a(f"ds_read_b64_tr_b16 v[{f+4*j}:{f+1+4*j}], v253 offset:{lb*5632+j*32}")
            a(f"ds_read_b64_tr_b16 v[{f+2+4*j}:{f+3+4*j}], v253 offset:{lb*5632+j*32+4*WST}")
    def bmm(st,fs,lo,hi):
        b=16+st*36; f=208+fs*20
        for q in range(lo,hi):
            i=q//5; j=q%5; acc=128+q*4
            a(f"v_mfma_f32_16x16x32_bf16 v[{acc}:{acc+3}], v[{f+4*j}:{f+3+4*j}], v[{b+4*i}:{b+3+4*i}], v[{acc}:{acc+3}]")
    bld(0); bld(1); bld(2)
    a("s_waitcnt vmcnt(18)"); bwr(0,0); a("s_waitcnt lgkmcnt(0)"); brd(0,0)
    a.lab("K3_BL")
    for u in range(6):
        st=u%3; fs=u%2
        a("s_waitcnt vmcnt(9)"); bwr((st+1)%3,(u+1)%2)
        a("s_waitcnt lgkmcnt(5)")
        bmm(st,fs,0,10)
        a("s_waitcnt lgkmcnt(0)"); brd(1-fs,(u+1)%2)
        bmm(st,fs,10,20)
        bld(st)
        a("s_sub_u32 s42, s42, 1"); a("s_cmp_eq_u32 s42, 0"); a("s_cbranch_scc1 K3_BD")
    a("s_branch K3_BL")
    a.lab("K3_BD")
    a("s_waitcnt vmcnt(0) lgkmcnt(0)")
    a.lab("K3_RED")
    srd(a,4,44,45,2621440); srd(a,8,70,71,1280); srd(a,12,64,65,5242880)
    a(f"s_add_u32 s72, s68, {WS_G}"); a("s_addc_u32 s73, s69, 0"); srd(a,16,72,73,8192)
    a("s_lshl_b32 s41, s37, 6"); a("s_lshl_b32 s42, s36, 4"); a("s_add_u32 s41, s41, s42"); a("v_add_u32 v6, s41, v3")
    a("s_mul_i32 s41, s38, 80"); a("v_lshl_add_u32 v7, v4, 2, s41")
    a("v_lshlrev_b32 v9, 2, v6"); a("buffer_load_dword v10, v9, s[16:19], 0 offen")
    a("v_mul_u32_u24 v9, 640, v6"); a("v_add_u32 v9, v9, v7")
    a("v_lshlrev_b32 v11, 1, v9"); a("v_lshlrev_b32 v12, 2, v9"); a("v_lshlrev_b32 v13, 1, v7")
    for j in range(5):
        a(f"buffer_load_dwordx2 v[{16+4*j}:{17+4*j}], v11, s[4:7], 0 offen offset:{j*32}")
        a(f"buffer_load_dwordx2 v[{18+4*j}:{19+4*j}], v13, s[8:11], 0 offen offset:{j*32}")
    a("s_nop 7")
    a("v_lshlrev_b32 v5, 4, v2"); a("s_mul_i32 s41, s36, 20480"); a("v_add_u32 v8, s41, v5")
    for q in range(20): a(f"ds_write_b128 v8, v[{128+4*q}:{131+4*q}] offset:{q*1024}")
    a("s_waitcnt lgkmcnt(0)"); a("s_barrier")
    a("s_mul_i32 s41, s36, 5120"); a("v_add_u32 v5, s41, v5")
    a("v_add_u32 v8, 40960, v5")
    for j in range(5):
        a(f"ds_read_b128 v[{40+16*j}:{43+16*j}], v5 offset:{j*1024}")
        a(f"ds_read_b128 v[{44+16*j}:{47+16*j}], v5 offset:{j*1024+20480}")
        a(f"ds_read_b128 v[{48+16*j}:{51+16*j}], v8 offset:{j*1024}")
        a(f"ds_read_b128 v[{52+16*j}:{55+16*j}], v8 offset:{j*1024+20480}")
    a("s_waitcnt vmcnt(0) lgkmcnt(0)")
    a("v_sub_f32 v14, 1.0, v10"); a("v_cvt_pk_bf16_f32 v14, v14, v14"); a("v_lshlrev_b32 v14, 16, v14")
    for j in range(5):
        p=40+16*j
        for e in range(4):
            xs=16+4*j+(e>>1); ds=18+4*j+(e>>1)
            if e&1: a(f"v_and_b32 v36, 0xffff0000, v{xs}"); a(f"v_and_b32 v37, 0xffff0000, v{ds}")
            else:   a(f"v_lshlrev_b32 v36, 16, v{xs}"); a(f"v_lshlrev_b32 v37, 16, v{ds}")
            a("v_mul_f32 v36, v36, v37"); a("v_cvt_pk_bf16_f32 v36, v36, v36"); a("v_lshlrev_b32 v36, 16, v36")
            a(f"v_add_f32 v36, v36, v{p+e}"); a(f"v_add_f32 v36, v36, v{p+4+e}")
            a(f"v_add_f32 v37, v{p+8+e}, v{p+12+e}")
            a("v_cvt_pk_bf16_f32 v37, v37, v37"); a("v_lshlrev_b32 v37, 16, v37")
            a("v_mul_f32 v37, v37, v14"); a("v_cvt_pk_bf16_f32 v37, v37, v37"); a("v_lshlrev_b32 v37, 16, v37")
            a(f"v_fma_f32 v{p+e}, v10, v36, v37")
        a(f"buffer_store_dwordx4 v[{p}:{p+3}], v12, s[12:15], 0 offen offset:{j*64}")
    a.lab("K3_END")
    a("s_endpgm")
    return a.text()
```

```python
from common import *
WST=176
def gen_k3():
    a=A()
    a.lab("k3_kernel")
    a("s_cmp_ge_u32 s2, 256"); a("s_cbranch_scc1 K3_END")
    a("s_load_dwordx16 s[44:59], s[0:1], 0")
    a("s_load_dwordx4 s[60:63], s[0:1], 88")
    a("s_load_dwordx4 s[64:67], s[0:1], 104")
    a("s_load_dwordx2 s[68:69], s[0:1], 120")
    a("s_load_dwordx2 s[70:71], s[0:1], 64")
    a("v_lshrrev_b32 v1, 6, v0"); a("v_and_b32 v2, 63, v0")
    a("s_nop 0"); a("v_readfirstlane_b32 s36, v1")
    a("s_and_b32 s37, s2, 31"); a("s_lshr_b32 s38, s2, 5")
    a("v_and_b32 v3, 15, v2"); a("v_lshrrev_b32 v4, 4, v2")
    a("s_waitcnt lgkmcnt(0)")
    for r in range(80): a(f"v_mov_b32 v{128+r}, 0")
    a("s_mul_i32 s74, s36, 20736")
    a("v_lshrrev_b32 v240, 3, v2"); a("v_and_b32 v241, 7, v2")
    a("v_mul_u32_u24 v242, 144, v240"); a("v_lshl_add_u32 v242, v241, 4, v242"); a("v_add_u32 v248, s74, v242")
    a("v_mul_u32_u24 v242, 144, v3"); a("v_lshl_add_u32 v242, v4, 4, v242"); a("v_add_u32 v249, s74, v242")
    a("s_cmp_ge_u32 s36, 2"); a("s_cbranch_scc1 K3_BW")
    a(f"s_add_u32 s72, s68, {WS_HS}"); a("s_addc_u32 s73, s69, 0"); srd(a,4,72,73,5242880)
    a("s_cmp_eq_u32 s36, 0"); a("s_cselect_b32 s72, s54, s56"); a("s_cselect_b32 s73, s55, s57"); srd(a,8,72,73,819200)
    a("s_lshl_b32 s41, s37, 6"); a("v_add_u32 v5, s41, v240"); a("v_mul_u32_u24 v5, 2560, v5")
    a("v_lshl_add_u32 v5, v241, 4, v5"); a("s_mul_i32 s41, s36, 1280"); a("v_add_u32 v5, s41, v5")
    a("s_mul_i32 s41, s38, 80"); a("v_add_u32 v6, s41, v240"); a("v_mul_u32_u24 v6, 1280, v6"); a("v_lshl_add_u32 v6, v241, 4, v6")
    a("s_mov_b32 s40, 0"); a("s_mov_b32 s42, 10"); a("s_mov_b32 s75, 20480"); a("s_mov_b32 s76, 10240")
    def ldA(astr):
        a("s_mov_b32 s77, s40")
        for i in range(8):
            a(f"buffer_load_dwordx4 v[{16+4*i}:{19+4*i}], v5, s[4:7], s77 offen")
            if i<7: a(f"s_add_u32 s77, s77, {astr}")
    def wrA():
        for i in range(8): a(f"ds_write_b128 v248, v[{16+4*i}:{19+4*i}] offset:{i*1152}")
    def mmk(kh,tr):
        for i in range(4): a(f"ds_read_b128 v[{88+4*i}:{91+4*i}], v249 offset:{i*2304+kh*64}")
        for j in range(5):
            if tr:
                a(f"ds_read_b64_tr_b16 v[{104+4*j}:{105+4*j}], v250 offset:{kh*32*WST+j*32}")
                a(f"ds_read_b64_tr_b16 v[{106+4*j}:{107+4*j}], v250 offset:{kh*32*WST+j*32+4*WST}")
            else: a(f"ds_read_b128 v[{104+4*j}:{107+4*j}], v249 offset:{9216+j*2304+kh*64}")
        a("s_waitcnt lgkmcnt(0)")
        for i in range(4):
            for j in range(5):
                acc=128+(i*5+j)*4
                a(f"v_mfma_f32_16x16x32_bf16 v[{acc}:{acc+3}], v[{104+4*j}:{107+4*j}], v[{88+4*i}:{91+4*i}], v[{acc}:{acc+3}]")
    def ldBnk():
        a("s_mov_b32 s77, s40")
        for j in range(10):
            a(f"buffer_load_dwordx4 v[{48+4*j}:{51+4*j}], v6, s[8:11], s77 offen")
            if j<9: a("s_add_u32 s77, s77, s76")
    ldA(20480); ldBnk(); a("s_add_u32 s40, s40, 128")
    a.lab("K3_AL")
    a("s_waitcnt vmcnt(0)"); wrA()
    for j in range(10): a(f"ds_write_b128 v248, v[{48+4*j}:{51+4*j}] offset:{9216+j*1152}")
    a("s_waitcnt lgkmcnt(0)")
    ldA(20480); ldBnk(); a("s_add_u32 s40, s40, 128")
    mmk(0,False); mmk(1,False)
    a("s_sub_u32 s42, s42, 1"); a("s_cmp_gt_u32 s42, 0"); a("s_cbranch_scc1 K3_AL")
    a("s_waitcnt vmcnt(0)")
    a("s_branch K3_RED")
    a.lab("K3_BW")
    a(f"s_add_u32 s72, s68, {WS_HRELU}"); a("s_addc_u32 s73, s69, 0"); srd(a,4,72,73,7077888)
    srd(a,8,60,61,2211840)
    a("s_sub_u32 s43, s36, 2")
    a("s_lshl_b32 s41, s37, 6"); a("v_add_u32 v5, s41, v240"); a("v_mul_u32_u24 v5, 3456, v5")
    a("v_lshl_add_u32 v5, v241, 4, v5"); a("s_mul_i32 s41, s43, 1792"); a("v_add_u32 v5, s41, v5")
    a("s_mov_b32 s41, 0x1999999a")
    a("s_mul_i32 s72, s43, 896*1280"); a("s_mul_i32 s73, s38, 160"); a("s_add_u32 s72, s72, s73")
    a("s_add_u32 s73, s74, 9216")
    for m in range(10):
        a(f"v_add_u32 v240, {64*m}, v2"); a("v_mul_hi_u32 v241, v240, s41"); a("v_mul_u32_u24 v242, 10, v241"); a("v_sub_u32 v242, v240, v242")
        a("v_mul_u32_u24 v243, 1280, v241"); a("v_lshl_add_u32 v243, v242, 4, v243"); a(f"v_add_u32 v{208+m}, s72, v243")
        a(f"v_mul_u32_u24 v243, {WST}, v241"); a("v_lshl_add_u32 v243, v242, 4, v243"); a(f"v_add_u32 v{220+m}, s73, v243")
    a("v_lshlrev_b32 v240, 3, v4"); a("v_bfe_u32 v241, v2, 2, 2"); a("v_add_u32 v240, v240, v241"); a(f"v_mul_u32_u24 v240, {WST}, v240")
    a("v_and_b32 v241, 3, v2"); a("v_lshl_add_u32 v240, v241, 3, v240"); a("v_add_u32 v250, s73, v240")
    a("s_mov_b32 s40, 0"); a("s_mov_b32 s39, 0"); a("s_sub_u32 s42, 14, s43")
    def ldW():
        for m in range(10): a(f"buffer_load_dwordx4 v[{48+4*m}:{51+4*m}], v{208+m}, s[8:11], s39 offen")
        a("s_add_u32 s39, s39, 81920")
    ldA(27648); ldW(); a("s_add_u32 s40, s40, 128")
    a.lab("K3_BL")
    a("s_waitcnt vmcnt(0)"); wrA()
    for m in range(10): a(f"ds_write_b128 v{220+m}, v[{48+4*m}:{51+4*m}]")
    a("s_waitcnt lgkmcnt(0)")
    ldA(27648); ldW(); a("s_add_u32 s40, s40, 128")
    mmk(0,True); mmk(1,True)
    a("s_sub_u32 s42, s42, 1"); a("s_cmp_gt_u32 s42, 0"); a("s_cbranch_scc1 K3_BL")
    a("s_waitcnt vmcnt(0)")
    a.lab("K3_RED")
    srd(a,4,44,45,2621440); srd(a,8,70,71,1280); srd(a,12,64,65,5242880)
    a(f"s_add_u32 s72, s68, {WS_G}"); a("s_addc_u32 s73, s69, 0"); srd(a,16,72,73,8192)
    a("s_lshl_b32 s41, s37, 6"); a("s_lshl_b32 s42, s36, 4"); a("s_add_u32 s41, s41, s42"); a("v_add_u32 v6, s41, v3")
    a("s_mul_i32 s41, s38, 80"); a("v_lshl_add_u32 v7, v4, 2, s41")
    a("v_lshlrev_b32 v9, 2, v6"); a("buffer_load_dword v10, v9, s[16:19], 0 offen")
    a("v_mul_u32_u24 v9, 640, v6"); a("v_add_u32 v9, v9, v7")
    a("v_lshlrev_b32 v11, 1, v9"); a("v_lshlrev_b32 v12, 2, v9"); a("v_lshlrev_b32 v13, 1, v7")
    for j in range(5):
        a(f"buffer_load_dwordx2 v[{16+4*j}:{17+4*j}], v11, s[4:7], 0 offen offset:{j*32}")
        a(f"buffer_load_dwordx2 v[{18+4*j}:{19+4*j}], v13, s[8:11], 0 offen offset:{j*32}")
    a("s_waitcnt lgkmcnt(0)"); a("s_barrier")
    a("v_lshlrev_b32 v5, 4, v2"); a("s_mul_i32 s41, s36, 20480"); a("v_add_u32 v8, s41, v5")
    for q in range(20): a(f"ds_write_b128 v8, v[{128+4*q}:{131+4*q}] offset:{q*1024}")
    a("s_waitcnt lgkmcnt(0)"); a("s_barrier")
    a("s_mul_i32 s41, s36, 5120"); a("v_add_u32 v5, s41, v5")
    a("v_add_u32 v8, 40960, v5")
    for j in range(5):
        a(f"ds_read_b128 v[{40+16*j}:{43+16*j}], v5 offset:{j*1024}")
        a(f"ds_read_b128 v[{44+16*j}:{47+16*j}], v5 offset:{j*1024+20480}")
        a(f"ds_read_b128 v[{48+16*j}:{51+16*j}], v8 offset:{j*1024}")
        a(f"ds_read_b128 v[{52+16*j}:{55+16*j}], v8 offset:{j*1024+20480}")
    a("s_waitcnt vmcnt(0) lgkmcnt(0)")
    a("v_sub_f32 v14, 1.0, v10"); a("v_cvt_pk_bf16_f32 v14, v14, v14"); a("v_lshlrev_b32 v14, 16, v14")
    for j in range(5):
        p=40+16*j
        for e in range(4):
            xs=16+4*j+(e>>1); ds=18+4*j+(e>>1)
            if e&1: a(f"v_and_b32 v36, 0xffff0000, v{xs}"); a(f"v_and_b32 v37, 0xffff0000, v{ds}")
            else:   a(f"v_lshlrev_b32 v36, 16, v{xs}"); a(f"v_lshlrev_b32 v37, 16, v{ds}")
            a("v_mul_f32 v36, v36, v37"); a("v_cvt_pk_bf16_f32 v36, v36, v36"); a("v_lshlrev_b32 v36, 16, v36")
            a(f"v_add_f32 v36, v36, v{p+e}"); a(f"v_add_f32 v36, v36, v{p+4+e}")
            a(f"v_add_f32 v37, v{p+8+e}, v{p+12+e}")
            a("v_cvt_pk_bf16_f32 v37, v37, v37"); a("v_lshlrev_b32 v37, 16, v37")
            a("v_mul_f32 v37, v37, v14"); a("v_cvt_pk_bf16_f32 v37, v37, v37"); a("v_lshlrev_b32 v37, 16, v37")
            a(f"v_fma_f32 v{p+e}, v10, v36, v37")
        a(f"buffer_store_dwordx4 v[{p}:{p+3}], v12, s[12:15], 0 offen offset:{j*64}")
    a.lab("K3_END")
    a("s_endpgm")
    return a.text()
```
